```python
import torch

def _softmax(x, axis=-1):
    return torch.softmax(x, dim=axis)

def _gelu(x):
    return torch.nn.functional.gelu(x, approximate='tanh')

def _silu(x):
    return torch.nn.functional.silu(x)

def _sigmoid(x):
    return torch.sigmoid(x)

def _layernorm(x, axis=-1, eps=1e-05):
    m = x.mean(dim=axis, keepdim=True)
    v = x.var(dim=axis, keepdim=True, unbiased=False)
    return (x - m) / torch.sqrt(v + eps)

def _scatter_add(tgt, idx, src, axis=0):
    return tgt.clone().index_add_(axis, idx, src)

def _segment_sum(src, seg, n):
    out = torch.zeros((n,) + src.shape[1:], dtype=src.dtype)
    return out.index_add_(0, seg, src)

def _pad(x, pw):
    flat = tuple((v for pair in reversed(pw) for v in pair))
    return torch.nn.functional.pad(x, flat)
kernel_name = 'standalone__conformer_family_branchformer__speech'

def setup_inputs():

    _w = lambda a: (lambda t: t.to(torch.bfloat16) if t.is_floating_point() else t)(torch.as_tensor(a))
    B, T, D, K = (2, 4000, 144, 5)
    s = float(D) ** (-0.5)
    return {'x': _w((lambda *s: torch.randn(*s, dtype=torch.bfloat16) * 0.05)(B, T, D)), 'w_q': _w((lambda *s: torch.randn(*s, dtype=torch.bfloat16) * 1.6)(D, D) * s), 'w_k': _w((lambda *s: torch.randn(*s, dtype=torch.bfloat16) * 1.6)(D, D) * s), 'w_v': _w((lambda *s: torch.randn(*s, dtype=torch.bfloat16) * 0.4)(D, D) * s), 'w_ao': _w((lambda *s: torch.randn(*s, dtype=torch.bfloat16) * 0.4)(D, D) * s), 'w_up': _w((lambda *s: torch.randn(*s, dtype=torch.bfloat16) * 0.8)(D, 2 * D) * s), 'dw': _w((lambda *s: torch.randn(*s, dtype=torch.bfloat16) * 0.8)(K, D) * (1.0 / K)), 'w_dn': _w((lambda *s: torch.randn(*s, dtype=torch.bfloat16) * 0.4)(D, D) * s), 'w_merge': _w((lambda *s: torch.randn(*s, dtype=torch.bfloat16) * 0.4)(2 * D, D) * s)}

def reference(x, w_q, w_k, w_v, w_ao, w_up, dw, w_dn, w_merge):
    B, T, D = x.shape
    K = dw.shape[0]
    xa = _layernorm(x, axis=-1)
    q = torch.einsum('btd,de->bte', xa, w_q)
    k = torch.einsum('btd,de->bte', xa, w_k)
    v = torch.einsum('btd,de->bte', xa, w_v)
    logits = torch.einsum('btd,bsd->bts', q, k) * float(D) ** (-0.5)
    attn = _softmax(logits, axis=-1)
    ya = torch.einsum('bts,bsd->btd', attn, v)
    ya = torch.einsum('btd,de->bte', ya, w_ao)
    xc = _layernorm(x, axis=-1)
    h = _gelu(torch.einsum('btd,de->bte', xc, w_up))
    u = h[..., :D].clone()
    g = _layernorm(h[..., D:], axis=-1)
    pad = K // 2
    gp = _pad(g, ((0, 0), (pad, pad), (0, 0)))
    conv = torch.zeros_like(g)
    for i in range(K):
        conv = conv + gp[:, i:i + T, :] * dw[i][None, None, :]
    yc = torch.einsum('btd,de->bte', u * conv, w_dn)
    merged = torch.concatenate([ya, yc], axis=-1)
    out = torch.einsum('btf,fd->btd', merged, w_merge)
    return x + out
```

```python
import re

class Asm:
    def __init__(self):
        self.lines = []
    def __call__(self, s):
        for l in s.strip('\n').split('\n'):
            l = l.strip()
            if l:
                self.lines.append(l)
    def label(self, n):
        self.lines.append(n + ':')
    def text(self):
        out = []
        for l in self.lines:
            if l.endswith(':') or l.startswith('.'):
                out.append(l)
            else:
                out.append('    ' + l)
        return '\n'.join(out) + '\n'

def vr(b, n=1, p='v'):
    return f'{p}{b}' if n == 1 else f'{p}[{b}:{b+n-1}]'
def ar(b, n=1):
    return vr(b, n, 'a')
def sr(b, n=1):
    return vr(b, n, 's')

_reg = re.compile(r'\b([vas])(\d+)\b|\b([vas])\[(\d+):(\d+)\]')
def regs(op):
    s = set()
    for m in _reg.finditer(op):
        if m.group(1):
            s.add((m.group(1), int(m.group(2))))
        else:
            for i in range(int(m.group(4)), int(m.group(5)) + 1):
                s.add((m.group(3), i))
    if re.search(r'\bvcc\b', op): s.add(('s', 'vcc'))
    if re.search(r'\bexec\b', op): s.add(('s', 'exec'))
    if re.search(r'\bm0\b', op): s.add(('s', 'm0'))
    return s

TRANS = ('v_exp_f32', 'v_log_f32', 'v_rcp_f32', 'v_rsq_f32', 'v_sqrt_f32', 'v_sin_f32', 'v_cos_f32')
def parse(l):
    l = l.split(';')[0].strip()
    p = l.split(None, 1)
    mn = p[0]
    ops = [o.strip() for o in p[1].split(',')] if len(p) > 1 else []
    d = dict(mn=mn, text=l, w=set(), r=set(), cls='other', ws=1, srcc=set(), ab=set())
    if mn == 's_nop':
        d['ws'] = int(ops[0], 0) + 1
        return d
    if mn.startswith('v_mfma'):
        d['cls'] = 'mfma'
        d['passes'] = 8 if '32x32' in mn else 4
        d['w'] = regs(ops[0]); d['ab'] = regs(ops[1]) | regs(ops[2]); d['srcc'] = regs(ops[3])
        d['r'] = d['ab'] | d['srcc']
        d['dstop'] = ops[0]; d['cop'] = ops[3].split()[0]
        return d
    if mn.startswith('v_'):
        d['cls'] = 'valu'
        nd = 1
        if mn.startswith(('v_add_co', 'v_addc_co', 'v_sub_co', 'v_div_scale', 'v_mad_u64')): nd = 2
        for o in ops[:nd]: d['w'] |= regs(o)
        for o in ops[nd:]: d['r'] |= regs(o)
        if mn.startswith(('v_fmac', 'v_dot2c', 'v_writelane')) or 'dpp' in mn or 'sdwa' in mn: d['r'] |= regs(ops[0])
        if mn.startswith('v_permlane'):
            d['r'] |= regs(ops[0]); d['w'] |= regs(ops[1])
        if mn.startswith('v_cmpx'): d['w'].add(('s', 'exec'))
        d['trans'] = mn.replace('_e32', '').replace('_e64', '') in TRANS
        d['dpp'] = 'dpp' in mn
        return d
    if mn.startswith('ds_'):
        d['cls'] = 'ds'
        if mn.startswith(('ds_read', 'ds_bpermute', 'ds_permute', 'ds_swizzle')):
            d['w'] = regs(ops[0])
            for o in ops[1:]: d['r'] |= regs(o)
        else:
            for o in ops: d['r'] |= regs(o)
        return d
    if mn.startswith(('buffer_', 'global_')):
        d['cls'] = 'vmem'
        islds = (' lds' in l) or ('_lds_' in mn)
        d['lds'] = islds
        if 'load' in mn and not islds:
            d['w'] = regs(ops[0])
            for o in ops[1:]: d['r'] |= regs(o)
        else:
            for o in ops: d['r'] |= regs(o)
            if 'store' in mn and ('x4' in mn or 'x3' in mn):
                d['sdata'] = regs(ops[0] if mn.startswith('buffer') else ops[1])
        return d
    if mn.startswith('s_'):
        d['cls'] = 'salu'
        if mn.startswith(('s_cmp', 's_cbranch', 's_branch', 's_waitcnt', 's_barrier', 's_endpgm', 's_setprio', 's_sleep', 's_bitcmp')):
            for o in ops: d['r'] |= regs(o)
        else:
            d['w'] = regs(ops[0]) if ops else set()
            for o in ops[1:]: d['r'] |= regs(o)
            if 'saveexec' in mn: d['w'].add(('s', 'exec'))
        return d
    return d

def need(p, c):
    n = 0
    vw = {x for x in p['w'] if x[0] in 'va'}
    sw = {x for x in p['w'] if x[0] == 's'}
    if p['cls'] == 'valu':
        if c['cls'] == 'mfma' and vw & c['r']: n = max(n, 2)
        if c['cls'] == 'mfma' and ('s', 'exec') in sw: n = max(n, 4)
        if c['cls'] == 'valu':
            if p.get('trans') and not c.get('trans') and vw & c['r']: n = max(n, 1)
            if c['mn'].startswith('v_permlane') and vw & c['r']: n = max(n, 2)
            if c.get('dpp') and vw & c['r']: n = max(n, 2)
            if c.get('dpp') and ('s', 'exec') in sw: n = max(n, 5)
            if c['mn'].startswith(('v_readlane', 'v_readfirstlane')) and vw & c['r']: n = max(n, 1)
            if sw & c['r']: n = max(n, 2)
            if p['mn'].startswith('v_dot') and vw & (c['r'] | c['w']) and not (c['mn'] == p['mn'] and not (vw & regs(','.join(c['text'].split(',')[1:3])))): n = max(n, 3)
            if c['mn'].startswith(('v_readlane', 'v_writelane')) and sw & c['r']: n = max(n, 4)
            if 'sdwa' in p['mn'] and 'dst_sel:DWORD' not in p['text'] and vw & (c['r'] | c['w']): n = max(n, 1)
        if c['cls'] == 'vmem' and sw & c['r']: n = max(n, 5)
    if p['cls'] == 'mfma':
        P = p['passes']
        if c['cls'] == 'mfma':
            if p['w'] & c['ab']: n = max(n, P + 4)
            if p['w'] & c['srcc']:
                if not (c['cop'] == p['dstop'] and c['passes'] == P): n = max(n, P + 2)
        elif c['cls'] in ('valu', 'ds', 'vmem'):
            if p['w'] & (c['r'] | c['w']): n = max(n, P + 4)
            if c['cls'] == 'valu' and p['srcc'] & c['w']: n = max(n, P - 1)
    if p['cls'] == 'salu' and ('s', 'm0') in p['w'] and c['cls'] == 'vmem' and c.get('lds'): n = max(n, 1)
    if p['cls'] == 'vmem' and p.get('sdata') and p['sdata'] & c['w']: n = max(n, 2)
    return n

def check(lines, name=''):
    ins = []; labels = {}
    for l in lines:
        t = l.split(';')[0].strip()
        if not t or t.startswith('.'): continue
        if t.endswith(':'):
            labels[t[:-1]] = len(ins); continue
        ins.append(parse(t))
    def succ(i):
        d = ins[i]; mn = d['mn']
        if mn == 's_endpgm': return []
        if mn == 's_branch': return [labels[d['text'].split()[1]]]
        if mn.startswith('s_cbranch'): return [i + 1, labels[d['text'].split()[1]]]
        return [i + 1]
    errs = set()
    for i, p in enumerate(ins):
        if p['cls'] not in ('valu', 'mfma', 'salu', 'vmem'): continue
        best = {}
        f0 = (p['passes'] - 1) if p['cls'] == 'mfma' else 0
        stack = [(j, 0, f0) for j in succ(i)]
        while stack:
            j, dist, free = stack.pop()
            if j >= len(ins) or dist > 13: continue
            c = ins[j]
            n = need(p, c)
            if c['cls'] == 'mfma' and not (p['cls'] == 'mfma' and n > 0):
                dist = max(dist, free)
            if j in best and best[j] <= (dist, free): continue
            best[j] = (dist, free)
            if n > dist: errs.add((i, j, n, dist))
            if c['cls'] == 'mfma':
                dist = max(dist, free); free = dist + c['passes']
            for k in succ(j): stack.append((k, dist + c['ws'], free))
    for (i, j, n, dist) in sorted(errs):
        print(f'HAZARD[{name}] need {n} have {dist}:\n    {ins[i]["text"]}\n    {ins[j]["text"]}')
    return len(errs)

def interleave(a, mf, gaps):
    for i, m in enumerate(mf):
        a(m)
        for f in gaps.get(i, []): a(f)

def spread(fill, g0, g1, gaps):
    n = g1 - g0 + 1
    for k, f in enumerate(fill):
        gaps.setdefault(g0 + k * n // len(fill), []).append(f)
```

```python
import sys, importlib
sys.path.insert(0, 'dev')
from asmlib import *
NAME = 'standalone__conformer_family_branchformer__speech'
def build(kerns, out, prof=False):
    hdr = ['; branchformer block: LN + attention + cgMLP, generated by dev/gen.py']
    for (lab, mod, grid, block, lds, nv, acc) in kerns:
        hdr.append(f'; @launch {"" if len(kerns) == 1 and "all" not in out else "kernel=" + lab + " "}grid=({grid},1,1) block=({block},1,1) lds={lds}')
    txt = '\n'.join(hdr) + '\n.amdgcn_target "amdgcn-amd-amdhsa--gfx950"\n.text\n'
    nerr = 0
    for (lab, mod, grid, block, lds, nv, acc) in kerns:
        a = Asm(); importlib.import_module(mod).gen(a, prof)
        nerr += check(a.lines, lab)
        txt += f'.globl {lab}\n.p2align 8\n.type {lab},@function\n{lab}:\n' + a.text()
    txt += '.section .rodata,"a"\n'
    for (lab, mod, grid, block, lds, nv, acc) in kerns:
        txt += f'''.p2align 6
.amdhsa_kernel {lab}
  .amdhsa_next_free_vgpr {nv}
  .amdhsa_next_free_sgpr 102
  .amdhsa_accum_offset {acc}
  .amdhsa_group_segment_fixed_size 0
  .amdhsa_kernarg_size 96
  .amdhsa_user_sgpr_count 2
  .amdhsa_user_sgpr_kernarg_segment_ptr 1
  .amdhsa_system_sgpr_workgroup_id_x 1
.end_amdhsa_kernel
'''
    open(out, 'w').write(txt)
    print('hazards', nerr, 'bytes', len(txt))
K = {'1': ('pre_kernel', 'k1', 238, 256, 92160, 512, 256),
     '2': ('attn_kernel', 'k2', 252, 256, 163840, 512, 256),
     'f': (NAME + '_kernel', 'k2', 256, 256, 163840, 512, 256),
     '3': ('post_kernel', 'k3', 250, 320, 20480, 208, 208)}
if __name__ == '__main__':
    which = sys.argv[1]; out = sys.argv[2]; prof = sys.argv[3] if len(sys.argv) > 3 else False
    build([K[c] for c in which], out, prof)
```
